```python
import torch

def _softmax(x, axis=-1):
    return torch.softmax(x, dim=axis)

def _gelu(x):
    return torch.nn.functional.gelu(x, approximate='tanh')

def _silu(x):
    return torch.nn.functional.silu(x)

def _sigmoid(x):
    return torch.sigmoid(x)

def _layernorm(x, axis=-1, eps=1e-05):
    m = x.mean(dim=axis, keepdim=True)
    v = x.var(dim=axis, keepdim=True, unbiased=False)
    return (x - m) / torch.sqrt(v + eps)

def _scatter_add(tgt, idx, src, axis=0):
    return tgt.clone().index_add_(axis, idx, src)

def _segment_sum(src, seg, n):
    out = torch.zeros((n,) + src.shape[1:], dtype=src.dtype)
    return out.index_add_(0, seg, src)

def _pad(x, pw):
    flat = tuple((v for pair in reversed(pw) for v in pair))
    return torch.nn.functional.pad(x, flat)
kernel_name = 'adaLN_cond__sliding_block_cached__geglu_ffn__prompt'

def setup_inputs():

    _w = lambda a: (lambda t: t.to(torch.bfloat16) if t.is_floating_point() else t)(torch.as_tensor(a))

    def _A_setup():
        B, Sq, D = (1, 2048, 640)
        Hq, Hkv, Sk, Dh = (32, 32, 2048, 192)
        assert Hq % Hkv == 0, (Hq, Hkv)
        return {'x': _w((lambda *s: torch.randn(*s, dtype=torch.bfloat16) * 0.05)(B, Sq, D)), 'k_cache': _w((lambda *s: torch.randn(*s, dtype=torch.bfloat16) * 3.2)(B, Hkv, Sk, Dh)), 'v_cache': _w((lambda *s: torch.randn(*s, dtype=torch.bfloat16) * 0.4)(B, Hkv, Sk, Dh)), 'wq': _w((lambda *s: torch.randn(*s, dtype=torch.bfloat16) * 3.2)(D, Hq * Dh) * D ** (-0.5)), 'wo': _w((lambda *s: torch.randn(*s, dtype=torch.bfloat16) * 0.4)(Hq * Dh, D) * (Hq * Dh) ** (-0.5))}
    _A_in = _A_setup()

    def _B_setup():
        B, S, D, F = (1, 2048, 640, 1536)
        return {'x': _w((lambda *s: torch.randn(*s, dtype=torch.bfloat16) * 0.05)(B, S, D)), 'w_gate': _w((lambda *s: torch.randn(*s, dtype=torch.bfloat16) * 0.05)(D, F)), 'w_up': _w((lambda *s: torch.randn(*s, dtype=torch.bfloat16) * 0.05)(D, F)), 'w_down': _w((lambda *s: torch.randn(*s, dtype=torch.bfloat16) * 0.05)(F, D))}
    _B_in = _B_setup()
    return {'A_x': _A_in['x'], 'A_k_cache': _A_in['k_cache'], 'A_v_cache': _A_in['v_cache'], 'A_wq': _A_in['wq'], 'A_wo': _A_in['wo'], 'B_x': _B_in['x'], 'B_w_gate': _B_in['w_gate'], 'B_w_up': _B_in['w_up'], 'B_w_down': _B_in['w_down'], 'c': _w((lambda *s: torch.randn(*s, dtype=torch.bfloat16) * 0.1)(1, 640) * 8.0), 'w_mod': _w((lambda *s: torch.randn(*s, dtype=torch.bfloat16) * 0.1)(640, 6 * 640) * 640 ** (-0.5) * 8.0)}

def reference(A_x, A_k_cache, A_v_cache, A_wq, A_wo, B_x, B_w_gate, B_w_up, B_w_down, c, w_mod):

    def _A_ref(x, k_cache, v_cache, wq, wo):
        B, Sq, D = x.shape
        Hq, Dh = (32, 192)
        Hkv, Sk = (k_cache.shape[1], k_cache.shape[2])
        W = min(4096, max(256, Sk // 4))
        rep = Hq // Hkv
        q = (lambda x, *d: x.permute(*d))((x @ wq).reshape(B, Sq, Hq, Dh), 0, 2, 1, 3)
        k = (lambda x, n, axis: torch.repeat_interleave(x, n, dim=axis))(k_cache[:, :, Sk - W:, :], rep, axis=1)
        v = (lambda x, n, axis: torch.repeat_interleave(x, n, dim=axis))(v_cache[:, :, Sk - W:, :], rep, axis=1)
        scores = torch.einsum('bhqd,bhkd->bhqk', q, k) * Dh ** (-0.5)
        p = _softmax(scores, axis=-1)
        o = torch.einsum('bhqk,bhkd->bhqd', p, v)
        return (lambda x, *d: x.permute(*d))(o, 0, 2, 1, 3).reshape(B, Sq, Hq * Dh) @ wo

    def _B_ref(x, w_gate, w_up, w_down):
        return _gelu(x @ w_gate) * (x @ w_up) @ w_down
    x = A_x
    mod = (_silu(c) @ w_mod).reshape(c.shape[0], 6, 1, -1)
    sa, ca, ga, sb, cb, gb = (mod[:, 0].clone(), mod[:, 1].clone(), mod[:, 2].clone(), mod[:, 3].clone(), mod[:, 4].clone(), mod[:, 5].clone())
    h = _layernorm(x, axis=-1) * (1 + ca) + sa
    x = x + ga * _A_ref(h, A_k_cache, A_v_cache, A_wq, A_wo)
    h = _layernorm(x, axis=-1) * (1 + cb) + sb
    x = x + gb * _B_ref(h, B_w_gate, B_w_up, B_w_down)
    return x
```

```python
import sys, importlib, os, re
sys.path.insert(0, 'gen')
import chk
def build(mods, hdr=''):
    head = ''; code = ''; kds = ''
    names = []
    for m in mods:
        mod = importlib.import_module(m)
        c, k = mod.gen()
        sm = os.environ.get('ST_' + m, 'sc1')
        if sm: c = re.sub(r'(buffer_store_dwordx4 .*)', lambda x: x.group(1) + ' ' + sm.replace('+', ' '), c)
        head += mod.LAUNCH + '\n'; code += c; kds += k; names.append(mod.NAME)
    asm = hdr + head + '.amdgcn_target "amdgcn-amd-amdhsa--gfx950"\n.text\n' + code + '.section .rodata,"a"\n' + kds
    errs = chk.check(asm, names, takes={'k2_kernel': [{'K2_slow'}]})
    return asm, errs
if __name__ == '__main__':
    asm, errs = build(sys.argv[2:])
    open(sys.argv[1], 'w').write(asm)
    print('\n'.join(errs[:40])); print(len(errs), 'problems;', len(asm), 'bytes', asm.count('\n'), 'lines')
```

```python
import re, sys

def regs(tok):
    tok = tok.strip()
    tok = re.sub(r'^-?(abs\()?', '', tok).rstrip(')') if tok.startswith(('-', 'abs(')) else tok
    tok = tok.strip('|')
    m = re.fullmatch(r'([vas])\[(\d+):(\d+)\]', tok)
    if m: return {(m.group(1), i) for i in range(int(m.group(2)), int(m.group(3)) + 1)}
    m = re.fullmatch(r'([vas])(\d+)', tok)
    if m: return {(m.group(1), int(m.group(2)))}
    if tok == 'vcc': return {('s', 'vcc_lo'), ('s', 'vcc_hi')}
    if tok in ('vcc_lo', 'vcc_hi'): return {('s', tok)}
    if tok == 'exec': return {('s', 'exec_lo'), ('s', 'exec_hi')}
    if tok in ('exec_lo', 'exec_hi'): return {('s', tok)}
    if tok == 'm0': return {('s', 'm0')}
    return set()

TRANS = ('v_exp_f32', 'v_log_f32', 'v_rcp_f32', 'v_rsq_f32', 'v_sqrt_f32', 'v_sin_f32', 'v_cos_f32', 'v_rcp_iflag_f32')

class I:
    def __init__(self, text, line):
        self.text = text; self.line = line
        t = text.split(';')[0].strip()
        p = t.split(None, 1)
        self.op = p[0]
        op = re.sub(r'_e(32|64)$', '', self.op)
        self.op = op
        rest = p[1] if len(p) > 1 else ''
        ops = []; depth = 0; cur = ''
        for ch in rest:
            if ch in '[(': depth += 1
            if ch in '])': depth -= 1
            if ch == ',' and depth == 0: ops.append(cur.strip()); cur = ''
            else: cur += ch
        if cur.strip(): ops.append(cur.strip())
        mods = ''
        if ops:
            q = ops[-1].split(None, 1)
            ops[-1] = q[0]
            if len(q) > 1: mods = q[1]
        self.ops = ops; self.mods = mods
        self.w = set(); self.r = set()
        self.kind = 'other'
        self.A = self.B = self.C = set()
        R = lambda i: regs(ops[i]) if i < len(ops) else set()
        if op.startswith('v_mfma'):
            self.kind = 'mfma'
            self.w = R(0); self.A = R(1); self.B = R(2); self.C = R(3)
            self.r = self.A | self.B | self.C
            self.passes = 8 if '32x32x16' in op else 4 if '16x16x32' in op else None
            assert self.passes, op
        elif op.startswith('v_'):
            self.kind = 'valu'
            self.dpp = ('row_' in mods or 'quad_perm' in mods or 'wave_' in mods or op.endswith('_dpp'))
            if op.startswith('v_cmp'):
                self.w = R(0); self.r = R(1) | R(2)
                if op.startswith('v_cmpx'): self.w |= regs('exec')
            elif op.startswith(('v_add_co', 'v_sub_co', 'v_subrev_co')):
                self.w = R(0) | R(1); self.r = R(2) | R(3)
            elif op.startswith(('v_addc_co', 'v_subb_co')):
                self.w = R(0) | R(1); self.r = R(2) | R(3) | R(4)
            elif op.startswith('v_permlane') and 'swap' in op:
                self.w = R(0) | R(1); self.r = R(0) | R(1)
            elif op in ('v_nop',):
                pass
            else:
                self.w = R(0)
                for i in range(1, len(ops)): self.r |= R(i)
                if op.startswith(('v_fmac', 'v_mac', 'v_pk_fmac', 'v_dot2c', 'v_fma_mixlo', 'v_fma_mixhi', 'v_writelane')) or self.dpp: self.r |= R(0)
                if op == 'v_cndmask_b32' and len(ops) == 3: self.r |= regs('vcc')
        elif op.startswith('ds_'):
            self.kind = 'ds'
            if op.startswith(('ds_read', 'ds_bpermute', 'ds_permute', 'ds_swizzle')) or '_rtn' in op:
                self.w = R(0)
                for i in range(1, len(ops)): self.r |= R(i)
            else:
                for i in range(len(ops)): self.r |= R(i)
        elif op.startswith(('buffer_', 'global_')):
            self.kind = 'vmem'
            self.lds = bool(re.search(r'\blds\b', mods)) or '_lds_' in op
            if op.startswith(('buffer_wbl2', 'buffer_inv')):
                pass
            elif 'load' in op and not self.lds:
                self.w = R(0)
                for i in range(1, len(ops)): self.r |= R(i)
            elif 'atomic' in op and 'sc0' in mods:
                if op.startswith('buffer'):
                    self.w = R(0)
                    for i in range(0, len(ops)): self.r |= R(i)
                else:
                    self.w = R(0)
                    for i in range(1, len(ops)): self.r |= R(i)
            else:
                for i in range(len(ops)): self.r |= R(i)
                if self.lds: self.r |= regs('m0')
                if 'store' in op and ('x3' in op or 'x4' in op):
                    self.wide = R(0) if op.startswith('buffer') else R(1)
        elif op.startswith('s_'):
            self.kind = 'salu'
            if op.startswith(('s_load', 's_buffer_load', 's_memtime', 's_memrealtime')):
                self.kind = 'smem'; self.w = R(0)
                for i in range(1, len(ops)): self.r |= R(i)
            elif op.startswith(('s_cmp', 's_bitcmp')):
                for i in range(len(ops)): self.r |= R(i)
            elif op.startswith(('s_waitcnt', 's_nop', 's_barrier', 's_branch', 's_cbranch', 's_endpgm', 's_setprio', 's_sleep')):
                pass
            else:
                self.w = R(0)
                for i in range(1, len(ops)): self.r |= R(i)
                if 'saveexec' in op: self.w |= regs('exec')
                if op in ('s_addk_i32', 's_mulk_i32'): self.r |= R(0)
        else:
            raise ValueError('unknown op ' + text)
    def states(self):
        if self.op == 's_nop': return int(self.ops[0], 0) + 1
        return 1

def parse(asm):
    ins = []; labels = {}
    intext = True
    for n, l in enumerate(asm.split('\n'), 1):
        t = l.split(';')[0].strip()
        if not t: continue
        if t.startswith('.section'): intext = False
        if t.startswith('.text'): intext = True
        if not intext or t.startswith('.'): continue
        if t.endswith(':'):
            labels[t[:-1]] = len(ins); continue
        ins.append(I(t, n))
    return ins, labels

def trace(ins, labels, start, take=None, reps=2):
    take = take or set()
    out = []; pc = start; cnt = {}
    while True:
        i = ins[pc]; out.append(i)
        if i.op == 's_endpgm': break
        if i.op == 's_branch': pc = labels[i.ops[0]]; continue
        if i.op.startswith('s_cbranch'):
            tgt = labels[i.ops[0]]
            if tgt <= pc and i.ops[0] in ('K2_swr', 'P0_gr'): pass
            elif tgt <= pc:
                c = cnt.get(pc, 0)
                if c < reps - 1: cnt[pc] = c + 1; pc = tgt; continue
                cnt[pc] = 0
            elif i.ops[0] in take:
                c = cnt.get(pc, 0)
                if c < 1:
                    cnt[pc] = c + 1; pc = tgt; continue
        pc += 1
        if len(out) > 2000000: raise RuntimeError('trace too long')
    return out

def isv(rs): return {r for r in rs if r[0] in 'va'}
def iss(rs): return {r for r in rs if r[0] == 's'}

def check_trace(tr):
    errs = []
    def need(p, c, d, n, why):
        if d < n: errs.append(f'HAZARD {why}: need {n} have {d}: line {p.line} [{p.text}] -> line {c.line} [{c.text}]')
    for j, c in enumerate(tr):
        d = 0
        k = j - 1
        while k >= 0 and d < 20:
            p = tr[k]
            if p.kind == 'valu':
                wv = isv(p.w); ws = iss(p.w)
                if c.kind == 'mfma' and wv & c.r: need(p, c, d, 2, 'valu->mfma')
                if c.kind == 'mfma' and ws & regs('exec'): need(p, c, d, 4, 'valu exec->mfma')
                if c.kind == 'valu':
                    if p.op in TRANS and c.op not in TRANS and wv & c.r: need(p, c, d, 1, 'trans->valu')
                    if c.op.startswith(('v_readfirstlane', 'v_readlane')) and wv & c.r: need(p, c, d, 1, 'valu->readlane')
                    if c.op.startswith('v_permlane') and wv & c.r: need(p, c, d, 2, 'valu->permlane')
                    if c.dpp and wv & c.r: need(p, c, d, 2, 'valu->dpp')
                    if ws & c.r: need(p, c, d, 4 if c.op.startswith(('v_readlane', 'v_writelane', 'v_div_fmas')) else 2, 'valu sgpr->valu')
                    if p.op.startswith(('v_fma_mixlo', 'v_fma_mixhi')) and wv & (c.r | c.w): need(p, c, d, 1, 'opsel->valu')
                if c.kind == 'vmem' and ws & c.r: need(p, c, d, 5, 'valu sgpr->vmem')
            if p.kind == 'mfma':
                n = 12 if p.passes == 8 else 8
                if c.kind == 'valu' and p.w & (c.r | c.w): need(p, c, d, n, 'mfma D->valu')
                if c.kind in ('vmem', 'ds') and p.w & (c.r | c.w): need(p, c, d, n, 'mfma D->mem')
                if c.kind == 'mfma':
                    if p.w & (c.A | c.B): need(p, c, d, n, 'mfma D->mfma AB')
                    if p.w & c.C and not (p.w == c.C and p.passes == c.passes): need(p, c, d, n - 2, 'mfma D->mfma C overlap')
                if c.kind == 'valu' and p.C & c.w: need(p, c, d, 7 if p.passes == 8 else 3, 'mfma C WAR valu')
                if c.kind in ('ds', 'vmem') and p.C & c.w: need(p, c, d, 7 if p.passes == 8 else 3, 'mfma C WAR load(conservative)')
            if p.kind == 'salu' and ('s', 'm0') in p.w and c.kind == 'vmem' and getattr(c, 'lds', False): need(p, c, d, 1, 'm0->dma')
            if p.kind == 'vmem' and hasattr(p, 'wide') and p.wide & c.w: need(p, c, d, 2 if c.kind == 'valu' else 1, 'wide store WAR')
            d += p.states()
            k -= 1
    vm = []; lg = []
    for c in tr:
        touched = c.r | c.w
        for q, nm in ((vm, 'vmcnt'), (lg, 'lgkmcnt')):
            for p in q:
                if p.w & touched and not (p.op == 'buffer_load_dword' and c.op == 'buffer_load_dword' and p.w == c.w):
                    errs.append(f'WAIT {nm}: line {p.line} [{p.text}] outstanding at line {c.line} [{c.text}]')
        if c.op == 's_waitcnt':
            t = c.text
            m = re.search(r'vmcnt\( ?(\d+)\)', t)
            if m:
                n = int(m.group(1)); assert n < 64
                while len(vm) > n: vm.pop(0)
            m = re.search(r'lgkmcnt\((\d+)\)', t)
            if m:
                n = int(m.group(1)); assert n < 16
                if n == 0: lg.clear()
                else:
                    ds = [p for p in lg if p.kind == 'ds']
                    drop = ds[:max(0, len(ds) - n)]
                    lg[:] = [p for p in lg if not any(p is q for q in drop)]
        elif c.kind == 'vmem':
            vm.append(c)
            if len(vm) > 63: errs.append(f'vmcnt overflow at line {c.line}')
        elif c.kind in ('ds', 'smem'):
            lg.append(c)
    seen = set(); out = []
    for e in errs:
        if e not in seen: seen.add(e); out.append(e)
    return out

def check(asm, kernels, takes=None):
    ins, labels = parse(asm)
    allerr = []
    for k in kernels:
        for take in ([set()] + (takes or {}).get(k, [])):
            tr = trace(ins, labels, labels[k], take, reps=3)
            e = check_trace(tr)
            allerr += [f'{k}{sorted(take)}: {x}' for x in e]
    return allerr

if __name__ == '__main__':
    asm = open(sys.argv[1]).read()
    ks = re.findall(r'@launch kernel=(\w+)', asm)
    e = check(asm, list(dict.fromkeys(ks)))
    print('\n'.join(e[:50])); print(len(e), 'problems')
```

```python
import sys
sys.path.insert(0, 'gen')
from build import build
ref = open('adaLN_cond__sliding_block_cached__geglu_ffn__prompt.s.ref').read().split('\n')
hdr = []
for l in ref:
    if l.startswith('; @launch') or l.startswith('; Override') or l.startswith('; grid=') : continue
    if not l.startswith(';'): break
    hdr.append(l)
out = sys.argv[1]
asm, errs = build(sys.argv[2:], '\n'.join(hdr) + '\n')
assert not errs, errs[:5]
open(out, 'w').write(asm)
print(len(asm))
```

```python
import sys, importlib, os, re
sys.path.insert(0, 'gen')
import chk
def build(mods, hdr=''):
    head = ''; code = ''; kds = ''
    names = []; takes = {'k2_kernel': [{'K2_slow'}]}
    for m in mods:
        mod = importlib.import_module(m)
        c, k = mod.gen()
        sm = os.environ.get('ST_' + m, '' if m == 'mega' else 'sc1')
        if hasattr(mod, 'TAKES'): takes[mod.NAME] = mod.TAKES
        if sm: c = re.sub(r'(buffer_store_dwordx4 .*)', lambda x: x.group(1) + ' ' + sm.replace('+', ' '), c)
        head += mod.LAUNCH + '\n'; code += c; kds += k; names.append(mod.NAME)
    asm = hdr + head + '.amdgcn_target "amdgcn-amd-amdhsa--gfx950"\n.text\n' + code + '.section .rodata,"a"\n' + kds
    errs = chk.check(asm, names, takes=takes)
    return asm, errs
if __name__ == '__main__':
    asm, errs = build(sys.argv[2:])
    open(sys.argv[1], 'w').write(asm)
    print('\n'.join(errs[:12])); print(len(errs), 'problems;', len(asm), 'bytes', asm.count('\n'), 'lines')
```
